```python
import torch

def _softmax(x, axis=-1):
    return torch.softmax(x, dim=axis)

def _gelu(x):
    return torch.nn.functional.gelu(x, approximate='tanh')

def _silu(x):
    return torch.nn.functional.silu(x)

def _sigmoid(x):
    return torch.sigmoid(x)

def _layernorm(x, axis=-1, eps=1e-05):
    m = x.mean(dim=axis, keepdim=True)
    v = x.var(dim=axis, keepdim=True, unbiased=False)
    return (x - m) / torch.sqrt(v + eps)

def _scatter_add(tgt, idx, src, axis=0):
    return tgt.clone().index_add_(axis, idx, src)

def _segment_sum(src, seg, n):
    out = torch.zeros((n,) + src.shape[1:], dtype=src.dtype)
    return out.index_add_(0, seg, src)

def _pad(x, pw):
    flat = tuple((v for pair in reversed(pw) for v in pair))
    return torch.nn.functional.pad(x, flat)
kernel_name = 'adaLN_cond__sliding_block__dense_activation_relu__prompt'

def setup_inputs():

    _w = lambda a: (lambda t: t.to(torch.bfloat16) if t.is_floating_point() else t)(torch.as_tensor(a))

    def _A_setup():
        B, S, D = (1, 2048, 448)
        return {'x': _w((lambda *s: torch.randn(*s, dtype=torch.bfloat16) * 0.05)(B, S, D)), 'wqkv': _w((lambda *s: torch.randn(*s, dtype=torch.bfloat16) * 0.05)(D, 3 * D)), 'wo': _w((lambda *s: torch.randn(*s, dtype=torch.bfloat16) * 0.05)(D, D))}
    _A_in = _A_setup()

    def _B_setup():
        B, S, D, Dff = (1, 2048, 448, 1792)
        return {'x': _w((lambda *s: torch.randn(*s, dtype=torch.bfloat16) * 0.05)(B, S, D)), 'w1': _w((lambda *s: torch.randn(*s, dtype=torch.bfloat16) * 0.05)(D, Dff)), 'w2': _w((lambda *s: torch.randn(*s, dtype=torch.bfloat16) * 0.05)(Dff, D))}
    _B_in = _B_setup()
    return {'A_x': _A_in['x'], 'A_wqkv': _A_in['wqkv'], 'A_wo': _A_in['wo'], 'B_x': _B_in['x'], 'B_w1': _B_in['w1'], 'B_w2': _B_in['w2'], 'c': _w((lambda *s: torch.randn(*s, dtype=torch.bfloat16) * 0.1)(1, 448) * 8.0), 'w_mod': _w((lambda *s: torch.randn(*s, dtype=torch.bfloat16) * 0.1)(448, 6 * 448) * 448 ** (-0.5) * 8.0)}

def reference(A_x, A_wqkv, A_wo, B_x, B_w1, B_w2, c, w_mod):

    def _A_ref(x, wqkv, wo):
        B, S, D = x.shape
        H = 16
        Dh = D // H
        W = 256
        qkv = (lambda x, *d: x.permute(*d))((x @ wqkv).reshape(B, S, 3, H, Dh), 2, 0, 3, 1, 4)
        q, k, v = (qkv[0], qkv[1], qkv[2])
        scores = torch.einsum('bhqd,bhkd->bhqk', q, k) * Dh ** (-0.5)
        idx = torch.arange(S)
        mask = (idx[:, None] - idx[None, :] >= 0) & (idx[:, None] - idx[None, :] < W)
        scores = torch.where(mask[None, None], scores, -1000000000.0)
        p = _softmax(scores, axis=-1)
        o = torch.einsum('bhqk,bhkd->bhqd', p, v)
        return (lambda x, *d: x.permute(*d))(o, 0, 2, 1, 3).reshape(B, S, D) @ wo

    def _B_ref(x, w1, w2):
        h = torch.einsum('bsd,df->bsf', x, w1)
        zero = torch.zeros_like(h)
        h = torch.maximum(h, zero)
        return torch.einsum('bsf,fd->bsd', h, w2)
    x = A_x
    mod = (_silu(c) @ w_mod).reshape(c.shape[0], 6, 1, -1)
    sa, ca, ga, sb, cb, gb = (mod[:, 0].clone(), mod[:, 1].clone(), mod[:, 2].clone(), mod[:, 3].clone(), mod[:, 4].clone(), mod[:, 5].clone())
    h = _layernorm(x, axis=-1) * (1 + ca) + sa
    x = x + ga * _A_ref(h, A_wqkv, A_wo)
    h = _layernorm(x, axis=-1) * (1 + cb) + sb
    x = x + gb * _B_ref(h, B_w1, B_w2)
    return x
```

```python
import sys, math, struct

NAME = "adaLN_cond__sliding_block__dense_activation_relu__prompt"

WS_MOD = 0x0
WS_XN  = 0x10000
WS_QKV = 0x200000
WS_O   = 0x800000
WS_X2  = 0xA00000
WS_ST  = 0xC00000
WS_H1  = 0xD00000
WS_WQ  = 0x1400000
WS_WO  = 0x1600000
WS_W1  = 0x1700000
WS_W2  = 0x1900000
WS_SIZE = 0x10000000

ARG_X, ARG_WQKV, ARG_WO, ARG_BX, ARG_W1, ARG_W2, ARG_C, ARG_WMOD, ARG_OUT, ARG_DBG, ARG_WS = [8*i for i in range(11)]

def f32bits(x):
    return struct.unpack("<I", struct.pack("<f", x))[0]

class Asm:
    def __init__(self):
        self.lines = []
    def __call__(self, s):
        for l in s.strip("\n").split("\n"):
            self.lines.append("    " + l.strip())
    def label(self, l):
        self.lines.append(l + ":")
    def raw(self, l):
        self.lines.append(l)
    def text(self):
        return "\n".join(self.lines) + "\n"

def srd(a, sreg, base_lo, size, add=0):
    a(f"s_mov_b32 s{sreg}, s{base_lo}")
    a(f"s_and_b32 s{sreg+1}, s{base_lo+1}, 0xffff")
    a(f"s_mov_b32 s{sreg+2}, {size}")
    a(f"s_mov_b32 s{sreg+3}, 0x00020000")

def kernel_begin(a, name):
    a.raw(f".globl {name}")
    a.raw(".p2align 8")
    a.raw(f".type {name},@function")
    a.label(name)

def kernel_desc(name, vgpr, agpr=0, sgpr=96):
    acc = ((vgpr + 3)//4)*4
    nfv = acc + agpr if agpr else vgpr
    return f""".p2align 6
.amdhsa_kernel {name}
  .amdhsa_next_free_vgpr {nfv}
  .amdhsa_next_free_sgpr {sgpr}
  .amdhsa_accum_offset {acc}
  .amdhsa_group_segment_fixed_size 0
  .amdhsa_kernarg_size 88
  .amdhsa_user_sgpr_count 2
  .amdhsa_user_sgpr_kernarg_segment_ptr 1
  .amdhsa_system_sgpr_workgroup_id_x 1
.end_amdhsa_kernel
"""

def round_bf16_inplace(a, v):
    a(f"v_cvt_pk_bf16_f32 v{v}, v{v}, v{v}")
    a(f"v_lshlrev_b32 v{v}, 16, v{v}")

KA_MOD = 42
KA_LN = 64
KA_WQ = 84
KA_WO = 28
KA_W1 = 98
KA_W2 = 98
KA_GRID = KA_MOD + KA_LN + KA_WQ + KA_WO + KA_W1 + KA_W2

def gen_ka(a):
    name = "ka_kernel"
    kernel_begin(a, name)
    a(f"s_load_dwordx2 s[4:5], s[0:1], {ARG_WS}")
    a(f"s_cmp_lt_u32 s2, {KA_MOD}")
    a("s_cbranch_scc1 KA_mod")
    c = KA_MOD
    a(f"s_cmp_lt_u32 s2, {c+KA_LN}")
    a("s_cbranch_scc1 KA_ln")
    c += KA_LN
    a(f"s_cmp_lt_u32 s2, {c+KA_WQ}")
    a("s_cbranch_scc1 KA_wq")
    c += KA_WQ
    a(f"s_cmp_lt_u32 s2, {c+KA_WO}")
    a("s_cbranch_scc1 KA_wo")
    c += KA_WO
    a(f"s_cmp_lt_u32 s2, {c+KA_W1}")
    a("s_cbranch_scc1 KA_w1")
    c += KA_W1
    a(f"s_cmp_lt_u32 s2, {c+KA_W2}")
    a("s_cbranch_scc1 KA_w2")
    a("s_endpgm")

    a.label("KA_mod")
    a(f"s_load_dwordx2 s[6:7], s[0:1], {ARG_WMOD}")
    a(f"s_load_dwordx2 s[12:13], s[0:1], {ARG_C}")
    a("v_and_b32 v1, 7, v0")
    a("v_lshrrev_b32 v2, 3, v0")
    a("s_movk_i32 s30, 5376")
    a("v_mul_lo_u32 v3, v2, s30")
    a("v_lshl_add_u32 v3, v1, 4, v3")
    a("s_lshl_b32 s31, s2, 7")
    a("v_add_u32 v3, s31, v3")
    a("v_lshlrev_b32 v4, 1, v2")
    a("s_waitcnt lgkmcnt(0)")
    srd(a, 8, 4, WS_SIZE)
    srd(a, 16, 6, 448*5376)
    srd(a, 20, 12, 896)
    W0 = 32
    C0 = 16
    for i in range(14):
        a(f"buffer_load_ushort v{C0+i}, v4, s[20:23], 0 offen offset:{i*64}")
    for i in range(14):
        a(f"s_mov_b32 s30, {i*32*5376}")
        a(f"buffer_load_dwordx4 v[{W0+4*i}:{W0+4*i+3}], v3, s[16:19], s30 offen")
    a("s_waitcnt vmcnt(14)")
    a(f"s_mov_b32 s30, {f32bits(-1.4426950408889634):#x}")
    for i in range(14):
        v = C0+i
        a(f"v_lshlrev_b32 v{v}, 16, v{v}")
        a(f"v_mul_f32 v5, s30, v{v}")
        a("v_exp_f32 v5, v5")
        a("s_nop 0")
        a("v_add_f32 v5, 1.0, v5")
        a("v_rcp_f32 v5, v5")
        a("s_nop 0")
        a(f"v_mul_f32 v{v}, v{v}, v5")
        round_bf16_inplace(a, v)
    ACC = 8
    for j in range(8):
        a(f"v_mov_b32 v{ACC+j}, 0")
    for i in range(14):
        a(f"s_waitcnt vmcnt({13-i})")
        for j in range(4):
            w = W0+4*i+j
            a(f"v_lshlrev_b32 v5, 16, v{w}")
            a(f"v_and_b32 v6, 0xffff0000, v{w}")
            a(f"v_fmac_f32 v{ACC+2*j}, v5, v{C0+i}")
            a(f"v_fmac_f32 v{ACC+2*j+1}, v6, v{C0+i}")
    a("v_lshlrev_b32 v5, 8, v2")
    a("v_lshl_add_u32 v5, v1, 5, v5")
    a(f"ds_write_b128 v5, v[{ACC}:{ACC+3}]")
    a(f"ds_write_b128 v5, v[{ACC+4}:{ACC+7}] offset:16")
    a("s_waitcnt lgkmcnt(0)")
    a("s_barrier")
    a("v_cmp_gt_u32 vcc, 64, v0")
    a("s_and_saveexec_b64 s[24:25], vcc")
    a("s_cbranch_execz KA_done")
    a("v_lshlrev_b32 v5, 2, v0")
    for r in range(32):
        a(f"ds_read_b32 v{32+r}, v5 offset:{r*256}")
    a("s_waitcnt lgkmcnt(0)")
    n = 32
    while n > 1:
        for r in range(n//2):
            a(f"v_add_f32 v{32+r}, v{32+r}, v{32+r+n//2}")
        n //= 2
    round_bf16_inplace(a, 32)
    a("s_lshl_b32 s31, s2, 8")
    a(f"buffer_store_dword v32, v5, s[8:11], s31 offen offset:{WS_MOD}")
    a("s_endpgm")

    a.label("KA_ln")
    a(f"s_load_dwordx2 s[6:7], s[0:1], {ARG_X}")
    a(f"s_sub_u32 s3, s2, {KA_MOD}")
    a("v_and_b32 v1, 7, v0")
    a("v_lshrrev_b32 v2, 3, v0")
    a("s_lshl_b32 s30, s3, 5")
    a("v_add_u32 v3, s30, v2")
    a("s_movk_i32 s31, 896")
    a("v_mul_lo_u32 v3, v3, s31")
    a("v_lshl_add_u32 v3, v1, 4, v3")
    a("s_waitcnt lgkmcnt(0)")
    srd(a, 8, 4, WS_SIZE)
    srd(a, 16, 6, 2048*896)
    L0 = 8
    F0 = 40
    for i in range(7):
        a(f"buffer_load_dwordx4 v[{L0+4*i}:{L0+4*i+3}], v3, s[16:19], 0 offen offset:{i*128}")
    a("v_lshrrev_b32 v4, 1, v1")
    a("v_lshlrev_b32 v4, 10, v4")
    a("v_and_b32 v5, 1, v1")
    a("v_lshl_add_u32 v4, v5, 9, v4")
    a("v_lshl_add_u32 v4, v2, 4, v4")
    a("s_mul_i32 s31, s3, 28672")
    a(f"s_add_u32 s31, s31, {WS_XN}")
    a("v_mov_b32 v5, 0")
    for i in range(7):
        a(f"s_waitcnt vmcnt({6-i})")
        for j in range(4):
            a(f"v_lshlrev_b32 v{F0+8*i+2*j}, 16, v{L0+4*i+j}")
            a(f"v_and_b32 v{F0+8*i+2*j+1}, 0xffff0000, v{L0+4*i+j}")
            a(f"v_add_f32 v5, v5, v{F0+8*i+2*j}")
            a(f"v_add_f32 v5, v5, v{F0+8*i+2*j+1}")
    def red8(v):
        a("s_nop 1")
        a(f"v_add_f32_dpp v{v}, v{v}, v{v} quad_perm:[1,0,3,2] row_mask:0xf bank_mask:0xf")
        a("s_nop 1")
        a(f"v_add_f32_dpp v{v}, v{v}, v{v} quad_perm:[2,3,0,1] row_mask:0xf bank_mask:0xf")
        a("s_nop 1")
        a(f"v_add_f32_dpp v{v}, v{v}, v{v} row_half_mirror row_mask:0xf bank_mask:0xf")
    red8(5)
    a(f"v_mul_f32 v5, {f32bits(1.0/448):#x}, v5")
    a("v_mov_b32 v6, 0")
    for e in range(56):
        a(f"v_sub_f32 v7, v{F0+e}, v5")
        a("v_fmac_f32 v6, v7, v7")
    red8(6)
    a(f"v_mul_f32 v6, {f32bits(1.0/448):#x}, v6")
    round_bf16_inplace(a, 6)
    a(f"v_add_f32 v6, {f32bits(1e-5):#x}, v6")
    round_bf16_inplace(a, 6)
    a("v_sqrt_f32 v6, v6")
    a("s_nop 0")
    round_bf16_inplace(a, 6)
    a("v_rcp_f32 v6, v6")
    round_bf16_inplace(a, 5)
    for i in range(7):
        for j in range(4):
            e0 = F0+8*i+2*j
            a(f"v_sub_f32 v{e0}, v{e0}, v5")
            a(f"v_sub_f32 v{e0+1}, v{e0+1}, v5")
            a(f"v_cvt_pk_bf16_f32 v7, v{e0}, v{e0+1}")
            a(f"v_lshlrev_b32 v{e0}, 16, v7")
            a(f"v_and_b32 v{e0+1}, 0xffff0000, v7")
            a(f"v_mul_f32 v{e0}, v{e0}, v6")
            a(f"v_mul_f32 v{e0+1}, v{e0+1}, v6")
            a(f"v_cvt_pk_bf16_f32 v{L0+4*i+j}, v{e0}, v{e0+1}")
        a(f"s_add_u32 s30, s31, {i*4096}")
        a(f"buffer_store_dwordx4 v[{L0+4*i}:{L0+4*i+3}], v4, s[8:11], s30 offen")
    a("s_endpgm")

    def shuffle(label, argoff, wg0, rows, pitch, ngroups, ws_dst, ks_total, kind):
        a.label(label)
        a(f"s_load_dwordx2 s[6:7], s[0:1], {argoff}")
        a(f"s_sub_u32 s3, s2, {wg0}")
        a("s_lshl_b32 s3, s3, 2")
        a("v_lshrrev_b32 v1, 6, v0")
        a("s_nop 0")
        a("v_readfirstlane_b32 s30, v1")
        a("s_nop 3")
        a("s_add_u32 s3, s3, s30")
        magic = (2**32 + ngroups - 1)//ngroups
        a(f"s_mov_b32 s31, {magic:#x}")
        a("s_mul_hi_u32 s32, s3, s31")
        a(f"s_mul_i32 s33, s32, {ngroups}")
        a("s_sub_u32 s33, s3, s33")
        a("v_and_b32 v1, 63, v0")
        a("v_and_b32 v2, 31, v1")
        a("v_lshrrev_b32 v3, 5, v1")
        if kind == "wq":
            a("s_mul_i32 s34, s32, 28")
            a("v_add_u32 v4, s34, v2")
            a("v_lshlrev_b32 v4, 1, v4")
            a(f"s_mov_b32 s35, {8*pitch}")
            a("v_mul_lo_u32 v5, v3, s35")
            a("v_add_u32 v4, v4, v5")
            a("v_cmp_gt_u32 vcc, 28, v2")
            a("v_mov_b32 v5, 0x7f000000")
            a("s_nop 0")
            a("v_cndmask_b32 v4, v5, v4, vcc")
        else:
            a("s_lshl_b32 s34, s32, 5")
            a("v_add_u32 v4, s34, v2")
            a("v_lshlrev_b32 v4, 1, v4")
            a(f"s_mov_b32 s35, {4*pitch}")
            a("v_mul_lo_u32 v5, v3, s35")
            a("v_add_u32 v4, v4, v5")
            if kind == "wo":
                a("v_cmp_eq_u32 vcc, 0, v3")
                a("v_mov_b32 v5, 0x7f000000")
                a("s_nop 0")
                a("v_cndmask_b32 v6, v5, v4, vcc")
        a("v_lshlrev_b32 v7, 4, v1")
        a("s_waitcnt lgkmcnt(0)")
        srd(a, 8, 4, WS_SIZE)
        srd(a, 16, 6, rows*pitch)
        if kind == "wo":
            a(f"s_mul_i32 s36, s33, {56*pitch}")
        else:
            a(f"s_mul_i32 s36, s33, {64*pitch}")
        D0 = 8
        for q in range(4):
            for i in range(8):
                if kind == "wq":
                    ro = 16*q + i
                    vo = 4
                elif kind == "wo":
                    ro = 28*(q//2) + 16*(q%2) + 8*(i//4) + (i%4)
                    vo = 6 if (q % 2 == 1 and i >= 4) else 4
                else:
                    ro = 16*q + 8*(i//4) + (i%4)
                    vo = 4
                a(f"s_add_u32 s37, s36, {ro*pitch}")
                a(f"buffer_load_ushort v{32+8*q+i}, v{vo}, s[16:19], s37 offen")
        a(f"s_mul_i32 s36, s32, {ks_total}")
        a("s_lshl_b32 s37, s33, 2")
        a("s_add_u32 s36, s36, s37")
        a("s_lshl_b32 s36, s36, 10")
        a(f"s_add_u32 s36, s36, {ws_dst}")
        for q in range(4):
            a(f"s_waitcnt vmcnt({24-8*q})" if q < 3 else "s_waitcnt vmcnt(3)")
            for j in range(4):
                a(f"v_lshl_or_b32 v{D0+4*q+j}, v{32+8*q+2*j+1}, 16, v{32+8*q+2*j}")
            a(f"buffer_store_dwordx4 v[{D0+4*q}:{D0+4*q+3}], v7, s[8:11], s36 offen offset:{q*1024}")
        a("s_endpgm")
    c = KA_MOD + KA_LN
    shuffle("KA_wq", ARG_WQKV, c, 448, 2688, 7, WS_WQ, 28, "wq")
    c += KA_WQ
    shuffle("KA_wo", ARG_WO, c, 448, 896, 8, WS_WO, 32, "wo")
    c += KA_WO
    shuffle("KA_w1", ARG_W1, c, 448, 3584, 7, WS_W1, 28, "perm")
    c += KA_W1
    shuffle("KA_w2", ARG_W2, c, 1792, 896, 28, WS_W2, 112, "perm")
    a.label("KA_done")
    a("s_endpgm")
    return kernel_desc(name, 96)

def gen_be(a, name, NT, ncb, ws_w, ws_act, mod_scale_off, mod_shift_off, is_e):
    L = name.upper()
    kernel_begin(a, name)
    a(f"s_cmp_ge_u32 s2, {16*ncb}")
    a(f"s_cbranch_scc1 {L}_done")
    a(f"s_load_dwordx2 s[4:5], s[0:1], {ARG_WS}")
    a("s_and_b32 s20, s2, 15")
    a("s_lshr_b32 s21, s2, 4")
    a("v_lshrrev_b32 v1, 6, v0")
    a("v_and_b32 v2, 63, v0")
    a("v_readfirstlane_b32 s22, v1")
    a("v_lshlrev_b32 v3, 4, v2")
    WBYTES = NT*28*1024
    CONST_A = WBYTES
    CONST_S = WBYTES + 1792
    a("s_waitcnt lgkmcnt(0)")
    srd(a, 8, 4, WS_SIZE)
    per = NT*7
    a(f"s_mul_i32 s23, s21, {WBYTES}")
    a(f"s_add_u32 s23, s23, {ws_w}")
    a(f"s_mul_i32 s24, s22, {per*1024}")
    a("s_add_u32 s23, s23, s24")
    for i in range(per):
        if i % 4 == 0:
            a(f"s_add_u32 s25, s24, {i*1024}")
            a("s_mov_b32 m0, s25")
            a(f"s_add_u32 s26, s23, {i*1024}")
        a(f"buffer_load_dwordx4 v3, s[8:11], s26 offen offset:{(i%4)*1024} lds")
    ACT = 16
    a("v_cmp_gt_u32 vcc, 112, v0")
    a("v_subrev_u32 v4, 112, v0")
    a("s_nop 0")
    a("v_cndmask_b32 v4, v4, v0, vcc")
    a(f"v_mov_b32 v5, {WS_MOD + mod_shift_off*4}")
    a(f"v_mov_b32 v6, {WS_MOD + mod_scale_off*4}")
    a("v_cndmask_b32 v5, v5, v6, vcc")
    a("v_lshl_add_u32 v5, v4, 4, v5")
    a("s_movk_i32 s42, 224")
    a("v_cmp_gt_u32 s[40:41], s42, v0")
    a("v_mov_b32 v6, 0x7f000000")
    a("s_nop 0")
    a("v_cndmask_b32 v5, v6, v5, s[40:41]")
    a("buffer_load_dwordx4 v[8:11], v5, s[8:11], 0 offen")
    a("s_lshl_b32 s24, s20, 2")
    a("s_add_u32 s24, s24, s22")
    a("s_mul_i32 s25, s24, 28672")
    a(f"s_add_u32 s25, s25, {ws_act}")
    for s in range(28):
        if s % 4 == 0:
            a(f"s_add_u32 s26, s25, {s*1024}")
        a(f"buffer_load_dwordx4 v[{ACT+4*s}:{ACT+4*s+3}], v3, s[8:11], s26 offen offset:{(s%4)*1024}")
    nst = 0
    if is_e:
        ST = 128
        a("v_and_b32 v6, 31, v2")
        a("s_lshl_b32 s26, s24, 5")
        a("v_add_u32 v6, s26, v6")
        a("s_movk_i32 s26, 112")
        a("v_mul_lo_u32 v6, v6, s26")
        a(f"s_mov_b32 s26, {WS_ST}")
        for i in range(7):
            a(f"buffer_load_dwordx4 v[{ST+4*i}:{ST+4*i+3}], v6, s[8:11], s26 offen offset:{i*16}")
        nst = 7
    if is_e:
        a("v_lshrrev_b32 v6, 2, v4")
        a("v_lshlrev_b32 v6, 6, v6")
        a("v_and_b32 v7, 1, v4")
        a("v_lshl_add_u32 v6, v7, 5, v6")
        a("v_bfe_u32 v7, v4, 1, 1")
        a("v_lshl_add_u32 v6, v7, 4, v6")
    else:
        a("v_lshlrev_b32 v6, 4, v4")
    a(f"v_mov_b32 v7, {CONST_S}")
    a(f"v_mov_b32 v12, {CONST_A}")
    a("v_cndmask_b32 v7, v7, v12, vcc")
    a("v_add_u32 v6, v6, v7")
    a(f"s_waitcnt vmcnt({28+nst})")
    for j in range(4):
        a(f"v_add_f32 v12, 1.0, v{8+j}")
        round_bf16_inplace(a, 12)
        a(f"v_cndmask_b32 v{8+j}, v{8+j}, v12, vcc")
    a("s_and_saveexec_b64 s[28:29], s[40:41]")
    a("ds_write_b128 v6, v[8:11]")
    a("s_mov_b64 exec, s[28:29]")
    if is_e:
        ST = 128
        a("s_waitcnt vmcnt(0)")
        for i in range(1, 14):
            a(f"v_add_f32 v{ST}, v{ST}, v{ST+2*i}")
            a(f"v_add_f32 v{ST+1}, v{ST+1}, v{ST+2*i+1}")
        a(f"v_mul_f32 v{ST}, {f32bits(1.0/448):#x}, v{ST}")
        a(f"v_mul_f32 v{ST+1}, {f32bits(1.0/448):#x}, v{ST+1}")
        a(f"v_fma_f32 v{ST+1}, -v{ST}, v{ST}, v{ST+1}")
        a(f"v_max_f32 v{ST+1}, 0, v{ST+1}")
        round_bf16_inplace(a, ST+1)
        a(f"v_add_f32 v{ST+1}, {f32bits(1e-5):#x}, v{ST+1}")
        round_bf16_inplace(a, ST+1)
        a(f"v_sqrt_f32 v{ST+1}, v{ST+1}")
        a("s_nop 0")
        round_bf16_inplace(a, ST+1)
        a(f"v_rcp_f32 v14, v{ST+1}")
        round_bf16_inplace(a, ST)
        a(f"v_mul_f32 v15, v{ST}, v14")
        a("v_sub_f32 v15, 0, v15")
    WB = 128
    CB = WB + 2*NT*4
    HB = CB + 32
    TB = HB + 8
    NV = TB + 8
    for i in range(NT*16):
        a(f"v_accvgpr_write_b32 a{i}, 0")
    a("v_lshrrev_b32 v5, 5, v2")
    a("v_lshlrev_b32 v5, 5, v5")
    a(f"v_add_u32 v5, {CONST_A}, v5")
    a("s_waitcnt vmcnt(0) lgkmcnt(0)")
    a("s_barrier")
    def rd_consts(s):
        cb = CB + 16*(s % 2)
        a(f"ds_read_b128 v[{cb}:{cb+3}], v5 offset:{s*64}")
        a(f"ds_read_b128 v[{cb+4}:{cb+7}], v5 offset:{s*64 + 16}")
        a(f"ds_read_b128 v[{cb+8}:{cb+11}], v5 offset:{1792 + s*64}")
        a(f"ds_read_b128 v[{cb+12}:{cb+15}], v5 offset:{1792 + s*64 + 16}")
    def rd_w(s):
        for t in range(NT):
            wb = WB + (s % 2)*NT*4 + 4*t
            off = (t*28 + s)*1024
            if off < 65536:
                a(f"ds_read_b128 v[{wb}:{wb+3}], v3 offset:{off}")
            else:
                a(f"ds_read_b128 v[{wb}:{wb+3}], v13 offset:{off-65536}")
    def modulate(s):
        out = []
        cb = CB + 16*(s % 2)
        hb = HB + 4*(s % 2)
        for j in range(4):
            x = ACT + 4*s + j
            t0, t1 = TB + 2*(j % 4), TB + 2*(j % 4) + 1
            out.append(f"v_lshlrev_b32 v{t0}, 16, v{x}")
            out.append(f"v_and_b32 v{t1}, 0xffff0000, v{x}")
            if is_e:
                out.append(f"v_fma_f32 v{t0}, v{t0}, v14, v15")
                out.append(f"v_fma_f32 v{t1}, v{t1}, v14, v15")
            out.append(f"v_fma_f32 v{t0}, v{t0}, v{cb+2*j}, v{cb+8+2*j}")
            out.append(f"v_fma_f32 v{t1}, v{t1}, v{cb+2*j+1}, v{cb+8+2*j+1}")
            out.append(f"v_cvt_pk_bf16_f32 v{hb+j}, v{t0}, v{t1}")
        return out
    a("v_add_u32 v13, 0x10000, v3")
    rd_consts(0); rd_consts(1); rd_w(0)
    a("s_waitcnt lgkmcnt(0)")
    for ins in modulate(0):
        a(ins)
    for s in range(28):
        if s+2 < 28:
            rd_consts(s+2)
        if s+1 < 28:
            rd_w(s+1)
        mod = modulate(s+1) if s+1 < 28 else []
        per_t = (len(mod) + NT - 1)//NT
        hb = HB + 4*(s % 2)
        a("s_nop 1")
        for t in range(NT):
            wb = WB + (s % 2)*NT*4 + 4*t
            a(f"v_mfma_f32_32x32x16_bf16 a[{16*t}:{16*t+15}], v[{wb}:{wb+3}], v[{hb}:{hb+3}], a[{16*t}:{16*t+15}]")
            for ins in mod[t*per_t:(t+1)*per_t]:
                a(ins)
        a("s_waitcnt lgkmcnt(0)")
    a("s_nop 7")
    a("s_nop 7")
    if not is_e:
        a("v_and_b32 v6, 31, v2")
        a("v_lshrrev_b32 v7, 3, v6")
        a("v_lshlrev_b32 v7, 4, v7")
        a("v_and_b32 v6, 7, v6")
        a("v_add_u32 v6, v6, v7")
        a("v_lshrrev_b32 v7, 5, v2")
        a("v_lshl_add_u32 v6, v7, 3, v6")
        a("v_lshlrev_b32 v6, 4, v6")
        a(f"s_mul_i32 s25, s21, {NT*131072}")
        a("s_lshl_b32 s26, s24, 11")
        a("s_add_u32 s25, s25, s26")
        a(f"s_add_u32 s25, s25, {WS_QKV}")
        tstride = 131072
    else:
        a("v_mov_b32 v6, v3")
        a("s_mul_i32 s25, s24, 114688")
        a(f"s_mul_i32 s26, s21, {NT*2048}")
        a("s_add_u32 s25, s25, s26")
        a(f"s_add_u32 s25, s25, {WS_H1}")
        tstride = 2048
    for t in range(NT):
        E0 = 16 + 24*(t % 2)
        for r in range(16):
            a(f"v_accvgpr_read_b32 v{E0+r}, a{16*t+r}")
        if is_e:
            for r in range(16):
                a(f"v_max_f32 v{E0+r}, 0, v{E0+r}")
        for r in range(8):
            a(f"v_cvt_pk_bf16_f32 v{E0+16+r}, v{E0+2*r}, v{E0+2*r+1}")
        a(f"s_add_u32 s26, s25, {t*tstride}")
        a(f"buffer_store_dwordx4 v[{E0+16}:{E0+19}], v6, s[8:11], s26 offen")
        a(f"buffer_store_dwordx4 v[{E0+20}:{E0+23}], v6, s[8:11], s26 offen offset:1024")
    a.label(f"{L}_done")
    a("s_endpgm")
    return kernel_desc(name, NV, NT*16), WBYTES + 3584

def gen_df(a, name, KS, ws_w, ws_act, gate_off, is_f, PD):
    L = name.upper()
    kernel_begin(a, name)
    a("s_cmp_ge_u32 s2, 224")
    a(f"s_cbranch_scc1 {L}_done")
    a(f"s_load_dwordx2 s[4:5], s[0:1], {ARG_WS}")
    if is_f:
        a(f"s_load_dwordx2 s[6:7], s[0:1], {ARG_OUT}")
    else:
        a(f"s_load_dwordx2 s[6:7], s[0:1], {ARG_X}")
    a("s_and_b32 s20, s2, 31")
    a("s_lshr_b32 s21, s2, 5")
    a("v_lshrrev_b32 v1, 6, v0")
    a("v_and_b32 v2, 63, v0")
    a("v_readfirstlane_b32 s22, v1")
    a("v_lshlrev_b32 v3, 4, v2")
    KW = KS//4
    a("s_waitcnt lgkmcnt(0)")
    srd(a, 8, 4, WS_SIZE)
    srd(a, 12, 6, 2048*896)
    a(f"s_mul_i32 s23, s22, {KW*1024}")
    a(f"s_mul_i32 s24, s21, {2*KS*1024}")
    a("s_add_u32 s24, s24, s23")
    a(f"s_add_u32 s24, s24, {ws_w}")
    a(f"s_add_u32 s25, s24, {KS*1024}")
    a(f"s_mul_i32 s26, s20, {2*KS*1024}")
    a("s_add_u32 s26, s26, s23")
    a(f"s_add_u32 s26, s26, {ws_act}")
    a(f"s_add_u32 s27, s26, {KS*1024}")
    FB = 16
    def issue(s):
        fb = FB + 16*(s % PD)
        if s % 4 == 0 and s > 0:
            for r in (24, 25, 26, 27):
                a(f"s_add_u32 s{r}, s{r}, 4096")
        o = (s % 4)*1024
        a(f"buffer_load_dwordx4 v[{fb}:{fb+3}], v3, s[8:11], s24 offen offset:{o}")
        a(f"buffer_load_dwordx4 v[{fb+4}:{fb+7}], v3, s[8:11], s25 offen offset:{o}")
        a(f"buffer_load_dwordx4 v[{fb+8}:{fb+11}], v3, s[8:11], s26 offen offset:{o}")
        a(f"buffer_load_dwordx4 v[{fb+12}:{fb+15}], v3, s[8:11], s27 offen offset:{o}")
    npre = min(PD, KW)
    for s in range(npre):
        issue(s)
    for i in range(64):
        a(f"v_accvgpr_write_b32 a{i}, 0")
    for s in range(KW):
        issued = min(KW, s + PD)
        a(f"s_waitcnt vmcnt({4*(issued - s - 1)})")
        fb = FB + 16*(s % PD)
        for r in range(2):
            for n in range(2):
                t = n + 2*r
                a(f"v_mfma_f32_32x32x16_bf16 a[{16*t}:{16*t+15}], v[{fb+4*n}:{fb+4*n+3}], v[{fb+8+4*r}:{fb+8+4*r+3}], a[{16*t}:{16*t+15}]")
        if s + PD < KW:
            issue(s + PD)
    a("s_and_b32 s28, s22, 1")
    a("s_lshr_b32 s29, s22, 1")
    a("s_lshl_b32 s30, s21, 1")
    a("s_add_u32 s30, s30, s28")
    a("s_lshl_b32 s31, s20, 1")
    a("s_add_u32 s31, s31, s29")
    a("v_lshrrev_b32 v4, 5, v2")
    a("v_and_b32 v5, 31, v2")
    GB = 16
    RB = 32
    a("v_lshlrev_b32 v6, 4, v4")
    a("s_lshl_b32 s32, s30, 7")
    a(f"s_add_u32 s32, s32, {WS_MOD + gate_off*4}")
    for j in range(4):
        a(f"buffer_load_dwordx4 v[{GB+4*j}:{GB+4*j+3}], v6, s[8:11], s32 offen offset:{j*32}")
    a("s_lshl_b32 s33, s31, 5")
    a("v_add_u32 v7, s33, v5")
    a("s_movk_i32 s33, 896")
    a("v_mul_lo_u32 v8, v7, s33")
    a("v_lshl_add_u32 v8, v4, 3, v8")
    a("s_lshl_b32 s34, s30, 6")
    if is_f:
        a("s_mul_i32 s35, s31, 28672")
        a("s_lshl_b32 s36, s30, 11")
        a("s_add_u32 s35, s35, s36")
        a(f"s_add_u32 s35, s35, {WS_X2}")
        a(f"buffer_load_dwordx4 v[{RB}:{RB+3}], v3, s[8:11], s35 offen")
        a(f"buffer_load_dwordx4 v[{RB+4}:{RB+7}], v3, s[8:11], s35 offen offset:1024")
    else:
        for j in range(4):
            a(f"buffer_load_dwordx2 v[{RB+2*j}:{RB+2*j+1}], v8, s[12:15], s34 offen offset:{j*16}")
    a("s_nop 7")
    a("s_nop 7")
    a("s_lshl_b32 s36, s22, 12")
    a("v_add_u32 v9, s36, v3")
    XB = 40
    for t in range(4):
        a(f"s_cmp_eq_u32 s22, {t}")
        a(f"s_cbranch_scc1 {L}_skipw{t}")
        for r in range(16):
            a(f"v_accvgpr_read_b32 v{XB+16*t+r}, a{16*t+r}")
        for c in range(4):
            a(f"ds_write_b128 v9, v[{XB+16*t+4*c}:{XB+16*t+4*c+3}] offset:{t*16384 + c*1024}")
        a.label(f"{L}_skipw{t}")
    OB = 104
    for t in range(4):
        a(f"s_cmp_lg_u32 s22, {t}")
        a(f"s_cbranch_scc1 {L}_skipo{t}")
        for r in range(16):
            a(f"v_accvgpr_read_b32 v{OB+r}, a{16*t+r}")
        a.label(f"{L}_skipo{t}")
    a("s_waitcnt lgkmcnt(0)")
    a("s_barrier")
    a("s_lshl_b32 s36, s22, 14")
    a("v_add_u32 v9, s36, v3")
    for k in range(1, 4):
        a(f"s_add_u32 s37, s22, {k}")
        a("s_and_b32 s37, s37, 3")
        a("s_lshl_b32 s37, s37, 12")
        a(f"v_add_u32 v10, s37, v9")
        for c in range(4):
            a(f"ds_read_b128 v[{XB+16*(k-1)+4*c}:{XB+16*(k-1)+4*c+3}], v10 offset:{c*1024}")
    a("s_waitcnt lgkmcnt(0)")
    for k in range(3):
        for r in range(16):
            a(f"v_add_f32 v{OB+r}, v{OB+r}, v{XB+16*k+r}")
    a("s_waitcnt vmcnt(0)")
    PK = 120
    for p in range(8):
        r0, r1 = OB+2*p, OB+2*p+1
        a(f"v_cvt_pk_bf16_f32 v10, v{r0}, v{r1}")
        a(f"v_lshlrev_b32 v{r0}, 16, v10")
        a(f"v_and_b32 v{r1}, 0xffff0000, v10")
        a(f"v_mul_f32 v{r0}, v{r0}, v{GB+2*p}")
        a(f"v_mul_f32 v{r1}, v{r1}, v{GB+2*p+1}")
        a(f"v_cvt_pk_bf16_f32 v10, v{r0}, v{r1}")
        a(f"v_lshlrev_b32 v{r0}, 16, v10")
        a(f"v_and_b32 v{r1}, 0xffff0000, v10")
        a(f"v_lshlrev_b32 v11, 16, v{RB+p}")
        a(f"v_and_b32 v12, 0xffff0000, v{RB+p}")
        a(f"v_add_f32 v{r0}, v{r0}, v11")
        a(f"v_add_f32 v{r1}, v{r1}, v12")
        a(f"v_cvt_pk_bf16_f32 v{PK+p}, v{r0}, v{r1}")
    if is_f:
        for j in range(4):
            a(f"buffer_store_dwordx2 v[{PK+2*j}:{PK+2*j+1}], v8, s[12:15], s34 offen offset:{j*16}")
    else:
        a("s_mul_i32 s35, s31, 28672")
        a("s_lshl_b32 s36, s30, 11")
        a("s_add_u32 s35, s35, s36")
        a(f"s_add_u32 s35, s35, {WS_X2}")
        a(f"buffer_store_dwordx4 v[{PK}:{PK+3}], v3, s[8:11], s35 offen")
        a(f"buffer_store_dwordx4 v[{PK+4}:{PK+7}], v3, s[8:11], s35 offen offset:1024")
        a("v_mov_b32 v10, 0")
        a("v_mov_b32 v11, 0")
        for p in range(8):
            a(f"v_lshlrev_b32 v12, 16, v{PK+p}")
            a(f"v_and_b32 v13, 0xffff0000, v{PK+p}")
            a("v_add_f32 v10, v10, v12")
            a("v_fmac_f32 v11, v12, v12")
            a("v_add_f32 v10, v10, v13")
            a("v_fmac_f32 v11, v13, v13")
        a("v_mov_b32 v12, v10")
        a("v_mov_b32 v13, v11")
        a("s_nop 1")
        a("v_permlane32_swap_b32 v10, v12")
        a("v_permlane32_swap_b32 v11, v13")
        a("s_nop 1")
        a("v_add_f32 v10, v10, v12")
        a("v_add_f32 v11, v11, v13")
        a("s_movk_i32 s33, 112")
        a("v_mul_lo_u32 v12, v7, s33")
        a("s_lshl_b32 s36, s30, 3")
        a(f"s_add_u32 s36, s36, {WS_ST}")
        a("v_cmp_gt_u32 vcc, 32, v2")
        a("s_and_saveexec_b64 s[38:39], vcc")
        a("buffer_store_dwordx2 v[10:11], v12, s[8:11], s36 offen")
    a.label(f"{L}_done")
    a("s_endpgm")
    nv = max(FB + 16*PD, 128)
    return kernel_desc(name, nv, 64), 65536

def gen_kc(a):
    name = "kc_kernel"
    L = "KC"
    kernel_begin(a, name)
    a("s_cmp_ge_u32 s2, 256")
    a(f"s_cbranch_scc1 {L}_done")
    a(f"s_load_dwordx2 s[4:5], s[0:1], {ARG_WS}")
    a("s_and_b32 s20, s2, 15")
    a("s_lshr_b32 s21, s2, 4")
    a("v_lshrrev_b32 v1, 6, v0")
    a("v_and_b32 v2, 63, v0")
    a("v_readfirstlane_b32 s22, v1")
    a("v_lshlrev_b32 v3, 4, v2")
    a("s_waitcnt lgkmcnt(0)")
    srd(a, 8, 4, WS_SIZE)
    KL = 0
    VL = 24576
    a("s_lshl_b32 s23, s20, 17")
    a("s_lshl_b32 s24, s21, 13")
    a("s_add_u32 s23, s23, s24")
    a(f"s_add_u32 s23, s23, {WS_QKV + 16*131072 - 8*2048}")
    a("s_mul_i32 s24, s22, 3072")
    a("s_add_u32 s25, s23, s24")
    a("s_mov_b32 m0, s24")
    a("s_nop 0")
    for i in range(3):
        a(f"buffer_load_dwordx4 v3, s[8:11], s25 offen offset:{i*1024} lds")
    a(f"s_add_u32 s26, s24, {VL}")
    a("s_mov_b32 m0, s26")
    a(f"s_add_u32 s25, s25, {16*131072}")
    for i in range(3):
        a(f"buffer_load_dwordx4 v3, s[8:11], s25 offen offset:{i*1024} lds")
    a("v_and_b32 v4, 15, v2")
    a("v_lshrrev_b32 v5, 4, v2")
    a("v_lshrrev_b32 v6, 1, v5")
    a("v_lshlrev_b32 v6, 10, v6")
    a("v_bfe_u32 v7, v4, 3, 1")
    a("v_lshl_add_u32 v6, v7, 8, v6")
    a("v_and_b32 v7, 1, v5")
    a("v_lshl_add_u32 v6, v7, 7, v6")
    a("v_and_b32 v7, 7, v2")
    a("v_lshl_add_u32 v6, v7, 4, v6")
    a("s_lshr_b32 s24, s22, 1")
    a("s_lshl_b32 s25, s21, 2")
    a("s_add_u32 s24, s24, s25")
    a("s_lshl_b32 s25, s24, 11")
    a("s_and_b32 s26, s22, 1")
    a("s_lshl_b32 s26, s26, 9")
    a("s_add_u32 s25, s25, s26")
    a("s_lshl_b32 s26, s20, 17")
    a("s_add_u32 s25, s25, s26")
    a(f"s_add_u32 s25, s25, {WS_QKV}")
    QF = 8
    a(f"buffer_load_dwordx4 v[{QF}:{QF+3}], v6, s[8:11], s25 offen")
    a("s_lshr_b32 s27, s22, 1")
    a("s_lshl_b32 s27, s27, 11")
    a("s_and_b32 s28, s22, 1")
    a("s_lshl_b32 s28, s28, 9")
    a("s_add_u32 s27, s27, s28")
    a("s_add_u32 s29, s22, 1")
    a("s_lshr_b32 s28, s29, 1")
    a("s_lshl_b32 s28, s28, 11")
    a("s_and_b32 s29, s29, 1")
    a("s_lshl_b32 s29, s29, 9")
    a("s_add_u32 s28, s28, s29")
    a("v_add_u32 v12, s27, v6")
    a("v_add_u32 v13, s28, v6")
    a("v_lshrrev_b32 v7, 1, v5")
    a("v_lshlrev_b32 v14, 8, v7")
    a("v_and_b32 v7, 1, v2")
    a("v_lshl_add_u32 v14, v7, 7, v14")
    a("v_and_b32 v7, 1, v5")
    a("v_lshl_add_u32 v14, v7, 6, v14")
    a("v_bfe_u32 v7, v2, 2, 2")
    a("v_lshl_add_u32 v14, v7, 4, v14")
    a("v_bfe_u32 v7, v2, 1, 1")
    a("v_lshl_add_u32 v14, v7, 3, v14")
    a("v_add_u32 v15, s28, v14")
    a("v_add_u32 v14, s27, v14")
    a("v_lshlrev_b32 v7, 2, v5")
    for r in range(4):
        a(f"v_add_u32 v16, {r}, v7")
        a(f"v_cmp_gt_u32 s[{40+2*r}:{41+2*r}], v16, v4")
    a("s_lshl_b32 s30, s21, 3")
    a("s_add_u32 s30, s30, s22")
    a("s_sub_i32 s30, 16, s30")
    a("s_max_i32 s30, s30, 0")
    S0 = 32
    KF = 100
    a("s_waitcnt vmcnt(0)")
    a("s_barrier")
    def kread(t):
        b = 12 if t % 2 == 0 else 13
        kf = KF + 4*(t % 4)
        a(f"ds_read_b128 v[{kf}:{kf+3}], v{b} offset:{KL + (t//2)*2048}")
    for t in range(3):
        kread(t)
    for t in range(17):
        if t + 3 < 17:
            kread(t+3)
        rem = min(16, t+3) - t
        a(f"s_waitcnt lgkmcnt({rem})")
        kf = KF + 4*(t % 4)
        a(f"v_mfma_f32_16x16x32_bf16 v[{S0+4*t}:{S0+4*t+3}], v[{kf}:{kf+3}], v[{QF}:{QF+3}], 0")
    a("s_nop 7")
    a(f"v_mov_b32 v16, {f32bits(-1e30):#x}")
    for r in range(4):
        a(f"v_cndmask_b32 v{S0+r}, v16, v{S0+r}, s[{40+2*r}:{41+2*r}]")
        a(f"v_cndmask_b32 v{S0+64+r}, v{S0+64+r}, v16, s[{40+2*r}:{41+2*r}]")
    for t in range(16):
        a(f"s_cmp_le_u32 s30, {t}")
        a(f"s_cbranch_scc1 {L}_noskip")
        for r in range(4):
            a(f"v_mov_b32 v{S0+4*t+r}, v16")
    a.label(f"{L}_noskip")
    a(f"v_max3_f32 v17, v{S0}, v{S0+1}, v{S0+2}")
    i = 3
    while i < 68:
        if i + 1 < 68:
            a(f"v_max3_f32 v17, v17, v{S0+i}, v{S0+i+1}")
            i += 2
        else:
            a(f"v_max_f32 v17, v17, v{S0+i}")
            i += 1
    def xreduce(v, tmp, op):
        a(f"v_mov_b32 v{tmp}, v{v}")
        a("s_nop 1")
        a(f"v_permlane32_swap_b32 v{v}, v{tmp}")
        a("s_nop 1")
        a(f"{op} v{v}, v{v}, v{tmp}")
        a(f"v_mov_b32 v{tmp}, v{v}")
        a("s_nop 1")
        a(f"v_permlane16_swap_b32 v{v}, v{tmp}")
        a("s_nop 1")
        a(f"{op} v{v}, v{v}, v{tmp}")
    xreduce(17, 18, "v_max_f32")
    cs = (28 ** -0.5) * 1.4426950408889634
    a(f"s_mov_b32 s31, {f32bits(cs):#x}")
    a("v_mul_f32 v17, s31, v17")
    a("v_mov_b32 v18, 0")
    for i in range(68):
        a(f"v_fma_f32 v{S0+i}, v{S0+i}, s31, -v17")
        a(f"v_exp_f32 v{S0+i}, v{S0+i}")
    for i in range(68):
        a(f"v_add_f32 v18, v18, v{S0+i}")
    P0 = 116
    for t in range(17):
        a(f"v_cvt_pk_bf16_f32 v{P0+2*t}, v{S0+4*t}, v{S0+4*t+1}")
        a(f"v_cvt_pk_bf16_f32 v{P0+2*t+1}, v{S0+4*t+2}, v{S0+4*t+3}")
    xreduce(18, 19, "v_add_f32")
    VF = 32
    def vread(t, mt, dst):
        b = 14 if t % 2 == 0 else 15
        a(f"ds_read_b64_tr_b16 v[{dst}:{dst+1}], v{b} offset:{VL + (t//2)*2048 + mt*1024}")
    for pr in range(9):
        for mt in range(2):
            d = VF + 8*pr + 4*mt
            vread(2*pr, mt, d)
            if pr < 8:
                vread(2*pr+1, mt, d+2)
    O0 = 20
    for j in range(8):
        a(f"v_mov_b32 v{O0+j}, 0")
    a("v_rcp_f32 v18, v18")
    nreads = 34
    done = 0
    for pr in range(9):
        for mt in range(2):
            d = VF + 8*pr + 4*mt
            done += 2 if pr < 8 else 1
            a(f"s_waitcnt lgkmcnt({min(15, nreads-done)})")
            if pr < 8:
                a(f"v_mfma_f32_16x16x32_bf16 v[{O0+4*mt}:{O0+4*mt+3}], v[{d}:{d+3}], v[{P0+4*pr}:{P0+4*pr+3}], v[{O0+4*mt}:{O0+4*mt+3}]")
            else:
                a(f"v_mfma_f32_16x16x16_bf16 v[{O0+4*mt}:{O0+4*mt+3}], v[{d}:{d+1}], v[{P0+4*pr}:{P0+4*pr+1}], v[{O0+4*mt}:{O0+4*mt+3}]")
    a("s_nop 7")
    a("s_nop 3")
    for j in range(8):
        a(f"v_mul_f32 v{O0+j}, v{O0+j}, v18")
    for mt in range(2):
        a(f"v_cvt_pk_bf16_f32 v{28+2*mt}, v{O0+4*mt}, v{O0+4*mt+1}")
        a(f"v_cvt_pk_bf16_f32 v{29+2*mt}, v{O0+4*mt+2}, v{O0+4*mt+3}")
    a("v_and_b32 v7, 1, v5")
    a("v_lshlrev_b32 v16, 9, v7")
    a("v_lshl_add_u32 v16, v4, 4, v16")
    a("v_lshrrev_b32 v7, 1, v5")
    a("v_lshl_add_u32 v16, v7, 3, v16")
    a("s_lshl_b32 s25, s24, 15")
    a("s_lshl_b32 s26, s20, 11")
    a("s_add_u32 s25, s25, s26")
    a("s_and_b32 s26, s22, 1")
    a("s_lshl_b32 s26, s26, 8")
    a("s_add_u32 s25, s25, s26")
    a(f"s_add_u32 s25, s25, {WS_O}")
    a("buffer_store_dwordx2 v[28:29], v16, s[8:11], s25 offen")
    a("buffer_store_dwordx2 v[30:31], v16, s[8:11], s25 offen offset:1024")
    a.label(f"{L}_done")
    a("s_endpgm")
    return kernel_desc(name, 152), 49152

def main():
    a = Asm()
    descs = []
    descs.append(gen_ka(a))
    d, lds_b = gen_be(a, "kb_kernel", 3, 16, WS_WQ, WS_XN, 448, 0, False)
    descs.append(d)
    d, lds_c = gen_kc(a)
    descs.append(d)
    d, lds_d = gen_df(a, "kd_kernel", 32, WS_WO, WS_O, 2*448, False, 8)
    descs.append(d)
    d, lds_e = gen_be(a, "ke_kernel", 4, 14, WS_W1, WS_X2, 4*448, 3*448, True)
    descs.append(d)
    d, lds_f = gen_df(a, "kf_kernel", 112, WS_W2, WS_H1, 5*448, True, 8)
    descs.append(d)
    hdr = f"""; adaLN-conditioned block: sliding-window attention + relu FFN (generated by gen/gen.py)
; @launch kernel=ka_kernel grid=({KA_GRID},1,1) block=(256,1,1) lds=8192
; @launch kernel=kb_kernel grid=(256,1,1) block=(256,1,1) lds={lds_b}
; @launch kernel=kc_kernel grid=(256,1,1) block=(512,1,1) lds={lds_c}
; @launch kernel=kd_kernel grid=(224,1,1) block=(256,1,1) lds={lds_d}
; @launch kernel=ke_kernel grid=(224,1,1) block=(256,1,1) lds={lds_e}
; @launch kernel=kf_kernel grid=(224,1,1) block=(256,1,1) lds={lds_f}
.amdgcn_target "amdgcn-amd-amdhsa--gfx950"
.text
"""
    out = hdr + a.text() + '.section .rodata,"a"\n' + "".join(descs)
    path = sys.argv[1] if len(sys.argv) > 1 else f"cdna_kernels/{NAME}.s"
    open(path, "w").write(out)
    print("wrote", path, len(out), "bytes")

if __name__ == "__main__":
    main()
```
